```python
import torch

def _softmax(x, axis=-1):
    return torch.softmax(x, dim=axis)
def _gelu(x):
    return torch.nn.functional.gelu(x, approximate="tanh")
def _silu(x):
    return torch.nn.functional.silu(x)
def _sigmoid(x):
    return torch.sigmoid(x)
def _layernorm(x, axis=-1, eps=1e-5):
    m = x.mean(dim=axis, keepdim=True)
    v = x.var(dim=axis, keepdim=True, unbiased=False)
    return (x - m) / torch.sqrt(v + eps)
def _scatter_add(tgt, idx, src, axis=0):
    return tgt.clone().index_add_(axis, idx, src)
def _segment_sum(src, seg, n):
    out = torch.zeros((n,) + src.shape[1:], dtype=src.dtype)
    return out.index_add_(0, seg, src)
def _pad(x, pw):
    flat = tuple(v for pair in reversed(pw) for v in pair)
    return torch.nn.functional.pad(x, flat)

kernel_name = 'parallel_sum__linear_attn_block__glu_gated_reglu__prompt'

def setup_inputs():

    _w = (lambda a: (lambda t: t.to(torch.bfloat16) if t.is_floating_point() else t)(torch.as_tensor(a)))
    def _A_setup():
        B, S, D = 1, 2048, 576
        return {
            "x": _w((lambda *s: torch.randn(*s, dtype=torch.bfloat16) * 0.05)(B, S, D)),
            "wqkv": _w((lambda *s: torch.randn(*s, dtype=torch.bfloat16) * 0.05)(D, 3 * D)),
            "wo": _w((lambda *s: torch.randn(*s, dtype=torch.bfloat16) * 0.05)(D, D)),
        }
    _A_in = _A_setup()

    def _B_setup():
        B, S, D, F = 1, 2048, 576, 4608
        return {
            "x": _w((lambda *s: torch.randn(*s, dtype=torch.bfloat16) * 0.05)(B, S, D)),
            "W_gate": _w((lambda *s: torch.randn(*s, dtype=torch.bfloat16) * 0.2)(D, F) * (2.0 / D) ** 0.5),
            "W_up": _w((lambda *s: torch.randn(*s, dtype=torch.bfloat16) * 0.2)(D, F) * (2.0 / D) ** 0.5),
            "W_down": _w((lambda *s: torch.randn(*s, dtype=torch.bfloat16) * 0.2)(F, D) * (1.0 / F) ** 0.5),
        }
    _B_in = _B_setup()

    return {
        "A_x": _A_in["x"],
        "A_wqkv": _A_in["wqkv"],
        "A_wo": _A_in["wo"],
        "B_x": _B_in["x"],
        "B_W_gate": _B_in["W_gate"],
        "B_W_up": _B_in["W_up"],
        "B_W_down": _B_in["W_down"],
    }

def reference(A_x, A_wqkv, A_wo, B_x, B_W_gate, B_W_up, B_W_down):
    def _A_ref(x, wqkv, wo):
        B, S, D = x.shape
        H = 32; Dh = D // H
        qkv = (lambda x, *d: x.permute(*d))((x @ wqkv).reshape(B, S, 3, H, Dh), 2, 0, 3, 1, 4)
        q, k, v = qkv[0], qkv[1], qkv[2]
        phi = lambda t: torch.where(t > 0, t + 1, torch.exp(t)) + 1e-6
        pq, pk = phi(q), phi(k)
        kv = torch.einsum("bhsd,bhse->bhde", pk, v)
        z = torch.einsum("bhsd->bhd", pk)
        num = torch.einsum("bhqd,bhde->bhqe", pq, kv)
        den = torch.einsum("bhqd,bhd->bhq", pq, z)[..., None] + 1e-6
        o = num / den
        return (lambda x, *d: x.permute(*d))(o, 0, 2, 1, 3).reshape(B, S, D) @ wo

    def _B_ref(x, W_gate, W_up, W_down):
        gate = torch.einsum("bsd,df->bsf", x, W_gate)
        up = torch.einsum("bsd,df->bsf", x, W_up)
        gate = gate * (lambda x, dt: x.to(dt))(gate > 0, gate.dtype)
        h = gate * up
        return torch.einsum("bsf,fd->bsd", h, W_down)

    x = A_x
    xn = _layernorm(x, axis=-1)
    return x + _A_ref(xn, A_wqkv, A_wo) + _B_ref(xn, B_W_gate, B_W_up, B_W_down)
```

```python
import re
RX = re.compile(r'\b([va])(?:\[(\d+):(\d+)\]|(\d+)\b)')
SX = re.compile(r'\bs(?:\[(\d+):(\d+)\]|(\d+)\b)')
TRANS = ('v_exp_f32','v_rcp_f32','v_rsq_f32','v_log_f32','v_sqrt_f32')
def regs(op):
    out=[]
    for m in RX.finditer(op):
        base = 0 if m.group(1)=='v' else 256
        if m.group(4) is not None: out.append(base+int(m.group(4)))
        else: out.extend(range(base+int(m.group(2)), base+int(m.group(3))+1))
    return out
def sregs(op):
    out=[]
    if 'vcc' in op: out.append(1000)
    for m in SX.finditer(op):
        if m.group(3) is not None: out.append(int(m.group(3)))
        else: out.extend(range(int(m.group(1)), int(m.group(2))+1))
    return out
class G:
    def __init__(s):
        s.o=[]; s.t=0
        s.vm=0; s.lg=0
        s.vmdone=0; s.lgdone=0
        s.pend={}
        s.w={}
        s.crd={}
        s.strd={}
        s.sw={}
        s.m0=-9
        s.nops=0; s.n=0
    def raw(s,x): s.o.append(x)
    def wait(s,vm=None,lg=None):
        p=[]
        if vm is not None:
            n=min(max(s.vm-vm,0),63)
            if vm>s.vmdone: p.append(f"vmcnt({n})"); s.vmdone=max(s.vmdone,s.vm-n)
        if lg is not None:
            n=min(max(s.lg-lg,0),15)
            if lg>s.lgdone: p.append(f"lgkmcnt({n})"); s.lgdone=max(s.lgdone,s.lg-n)
        if p: s.o.append("s_waitcnt "+" ".join(p)); s.t+=1
    def waitall(s): s.wait(s.vm,s.lg)
    def e(s,text):
        for x in text.split("\n"):
            x=x.strip()
            if x: s.e1(x)
    def e1(s,x):
        if x.endswith(':') or x.startswith('.') or x.startswith(';'): s.o.append(x); return
        sp=x.split(None,1); op=sp[0]; ops=[a.strip() for a in sp[1].split(',')] if len(sp)>1 else []
        dst=[];src=[];srcC=[];kind='s'; sd=[]; ss=[]
        if op.startswith('ds_read'): kind='dsr'; dst=regs(ops[0]); src=regs(ops[1])
        elif op.startswith('ds_'): kind='dsw'; src=regs(sp[1])
        elif op.startswith('buffer_load'):
            if ' lds' in x: kind='dma'; src=regs(ops[0])
            else: kind='vml'; dst=regs(ops[0]); src=regs(ops[1])
            ss=sregs(sp[1])
        elif op.startswith('buffer_'): kind='vms'; src=regs(sp[1]); ss=sregs(sp[1])
        elif op.startswith('v_mfma'): kind='mf'; dst=regs(ops[0]); src=regs(ops[1])+regs(ops[2]); srcC=regs(ops[3])
        elif op.startswith('v_permlane'): kind='v'; dst=regs(sp[1]); src=dst
        elif op.startswith('v_'):
            kind='v'; dst=regs(ops[0]); src=regs(",".join(ops[1:])); sd=sregs(ops[0]); ss=sregs(",".join(ops[1:]))
            if op.startswith('v_cndmask') and len(ops)==3: ss.append(1000)
        nv=nl=None
        for r in dst+src+srcC:
            if r in s.pend:
                k,q=s.pend[r]
                if k=='vm': nv=max(nv or 0,q)
                else: nl=max(nl or 0,q)
        s.wait(nv,nl)
        for r in dst+src+srcC: s.pend.pop(r,None)
        need=0
        def req(t0,n):
            nonlocal need
            need=max(need, n-(s.t-t0-1))
        if kind!='s':
            for r in src+(dst if kind!='mf' else []):
                if r in s.w:
                    k,t0,o0=s.w[r]
                    if k=='mf': req(t0,8)
                    elif k=='v' and r in src:
                        if kind=='mf' or op.startswith('v_permlane') or 'quad_perm' in x or 'row_' in x: req(t0,2)
                        if op.startswith('v_readfirst'): req(t0,1)
                        if o0 in TRANS: req(t0,1)
                    if k=='v' and o0.startswith('v_dot') and o0!=op: req(t0,3)
            if kind=='mf':
                for r in srcC+dst:
                    if r in s.w:
                        k,t0,o0=s.w[r]
                        if k=='v': req(t0,2)
                        elif k=='mf' and (o0!=op or srcC!=dst): req(t0,8)
            if kind=='v':
                for r in dst:
                    if r in s.crd: req(s.crd[r],3)
                    if r in s.strd: req(s.strd[r],2)
            for r in ss:
                if r in s.sw: req(s.sw[r], 5 if kind in('dma','vml','vms') else 2)
            if kind=='dma': req(s.m0,1)
        else:
            for r in sregs(sp[1] if len(sp)>1 else ''):
                if r in s.sw: req(s.sw[r],1)
        if need>0:
            s.o.append(f"s_nop {need-1}"); s.t+=need; s.nops+=need
        s.o.append(x); s.n+=1
        if kind in('dsr','dsw'): s.lg+=1
        if kind in('dma','vml','vms'): s.vm+=1
        if kind=='dsr':
            for r in dst: s.pend[r]=('lg',s.lg); s.w.pop(r,None)
        if kind=='vml':
            for r in dst: s.pend[r]=('vm',s.vm); s.w.pop(r,None)
        if kind in('v','mf'):
            for r in dst: s.w[r]=(kind,s.t,op)
        if kind=='mf':
            for r in srcC: s.crd[r]=s.t
        if kind in('vms','dsw'):
            for r in src: s.strd[r]=s.t
        for r in sd: s.sw[r]=s.t
        if kind=='s' and ops and ops[0]=='m0': s.m0=s.t
        if op=='s_nop': s.t+=int(ops[0])
        s.t+=1
def V(b,n=1):
    p,b=('v',b) if b<256 else ('a',b-256)
    return f"{p}{b}" if n==1 else f"{p}[{b}:{b+n-1}]"
```

```python
import sys
sys.path.insert(0,'dev')
from asmgen import G,V
NAME="parallel_sum__linear_attn_block__glu_gated_reglu__prompt"
RING=90112; SLOT=24576; KVOFF=50331648; PJ=2359296
FB=32; ACC=48; XV=144; PQ=176; TM=192
MF="v_mfma_f32_16x16x32_bf16"
def X(ks,tt): return V(256+16*ks+4*tt,4) if ks<16 else V(XV+16*(ks-16)+4*tt,4)
def Xr(ks,tt): return 256+16*ks+4*tt if ks<16 else XV+16*(ks-16)+4*tt
def A(st,ft,tt): return ACC+32*st+16*ft+4*tt

def srd(g,b,lo,size):
    g.e(f"s_mov_b32 s{b}, s{lo}\ns_mov_b32 s{b+1}, s{lo+1}\ns_mov_b32 s{b+2}, {size}\ns_mov_b32 s{b+3}, 0x20000")

def k1(opt):
    g=G(); e=g.e
    depth=opt.get('depth',3); NF=4; rate=opt.get('rate',2); TS=opt.get('ts',False)
    stf=opt.get('stf','')
    nts=[0]
    def ts():
        if TS:
            g.raw(f"s_memrealtime s[{72+2*nts[0]}:{73+2*nts[0]}]\ns_waitcnt lgkmcnt(0)"); g.lgdone=g.lg; nts[0]+=1
    e("s_cmp_ge_u32 s2, 256\ns_cbranch_scc1 L1_end")
    g.raw("s_load_dwordx4 s[64:67], s[0:1], 0\ns_load_dwordx2 s[68:69], s[0:1], 16\ns_load_dwordx4 s[56:59], s[0:1], 32\ns_load_dwordx2 s[60:61], s[0:1], 48\ns_load_dwordx4 s[92:95], s[0:1], 64")
    e("v_lshrrev_b32 v1, 6, v0\nv_and_b32 v0, 63, v0\nv_readfirstlane_b32 s3, v1")
    e("s_and_b32 s4, s2, 7\ns_lshl_b32 s4, s4, 1\ns_lshr_b32 s5, s2, 3\ns_and_b32 s5, s5, 1\ns_or_b32 s4, s4, s5\ns_lshr_b32 s5, s2, 4")
    e("s_lshr_b32 s6, s3, 1\ns_and_b32 s7, s3, 1")
    e("v_lshrrev_b32 v250, 4, v0\nv_and_b32 v251, 15, v0\nv_bfe_u32 v252, v0, 2, 2\nv_and_b32 v253, 3, v0\nv_bfe_u32 v254, v0, 2, 3\nv_lshrrev_b32 v255, 5, v0")
    e("v_mul_u32_u24 v249, 1152, v251\nv_lshl_add_u32 v249, v250, 4, v249")
    e("s_lshl_b32 s62, s5, 2\ns_add_u32 s62, s62, s3\ns_mul_i32 s62, s62, 36864\ns_add_u32 s63, s62, 18432")
    g.raw("s_waitcnt lgkmcnt(0)")
    ts()
    srd(g,8,64,2359296)
    for ks in range(18):
        for tt in range(2):
            e(f"buffer_load_dwordx4 {V(ACC+8*ks+4*tt,4)}, v249, s[8:11], s{62+tt} offen offset:{ks*64}")
    srd(g,12,66,1990656); srd(g,32,68,663552); srd(g,16,56,5308416); srd(g,20,58,5308416); srd(g,28,60,5308416)
    srd(g,40,92,256); srd(g,36,94,268435456)
    e("s_cmp_eq_u32 s6, 0\ns_cselect_b32 s24, s56, s58\ns_cselect_b32 s25, s57, s59\ns_mov_b32 s26, 5308416\ns_mov_b32 s27, 0x20000")
    e(f"s_lshl_b32 s44, s3, 10\ns_add_u32 s44, s44, {RING}")
    e("v_lshlrev_b32 v240, 2, v250\nv_sub_u32 v240, v251, v240\ns_lshl_b32 s45, s6, 1\nv_subrev_u32 v240, s45, v240\nv_and_b32 v240, 15, v240\nv_min_u32 v240, 14, v240")
    e("v_mul_u32_u24 v241, 13, v240\nv_lshrrev_b32 v241, 6, v241")
    e("v_mul_u32_u24 v242, 1072, v241\nv_lshl_add_u32 v242, v240, 4, v242")
    e("v_mul_u32_u24 v1, 3456, v250\nv_add_u32 v1, v1, v242")
    e("s_mul_i32 s45, s3, 13824\ns_mul_i32 s46, s4, 72\ns_and_b32 s47, s46, 0xfffffff0\ns_add_u32 s45, s45, s47\nv_add_u32 v1, s45, v1")
    stages=[]
    for S in range(6): stages.append([(n*4096,12,1,None,(S*96+16*n)*3456) for n in range(6)])
    for p in range(4):
        for sr in (16,20):
            for S in range(3): stages.append([(n*4096,sr,2,48,p*128+(S*192+32*n)*9216) for n in range(6)])
    for S in range(3): stages.append([(n*4096,24,3,49,(S*192+32*n)*9216) for n in range(6)])
    for nb in range(9):
        stages.append([(n*4096,28,4,50,nb*128+32*n*1152) for n in range(6)])
        stages.append([(0,28,4,50,nb*128+32*6*1152),(4096,28,4,50,nb*128+32*7*1152),(8192,28,4,51,nb*128),(12288,32,5,52,nb*128),(16384,32,6,52,nb*128)])
    dmaseq={}
    def dma(S,n):
        off,sr,vo,sb,lit=stages[S][n]
        return [f"s_add_u32 m0, s44, {(S%3)*SLOT+off}", (f"s_add_u32 s45, s{sb}, {lit}" if sb else f"s_mov_b32 s45, {lit}"),
                f"buffer_load_dwordx4 v{vo}, s[{sr}:{sr+3}], s45 offen lds"]
    for S in range(2):
        for n in range(6):
            for x in dma(S,n): e(x)
        dmaseq[S]=g.vm
    e("s_and_b32 s45, s4, 1\ns_mul_i32 s48, s4, 576\ns_lshl_b32 s46, s45, 6\ns_xor_b32 s45, s45, 1\ns_lshl_b32 s45, s45, 9\ns_add_u32 s49, s48, s45\ns_add_u32 s48, s48, s46")
    e("s_mul_i32 s50, s48, 576\ns_mul_i32 s51, s49, 576\ns_mul_i32 s52, s4, 41472")
    e(f"s_mul_i32 s53, s4, {PJ}\ns_mul_i32 s45, s5, 147456\ns_add_u32 s53, s53, s45")
    e(f"s_lshl_b32 s55, s4, 16\ns_add_u32 s55, s55, {KVOFF}\ns_lshl_b32 s45, s5, 12\ns_add_u32 s54, s55, s45")
    e("s_lshl_b32 s45, s7, 1\nv_xor_b32 v240, s45, v253\nv_lshlrev_b32 v240, 4, v240\nv_lshl_add_u32 v240, v255, 6, v240")
    e("s_mul_i32 s45, s3, 73728\nv_mul_u32_u24 v2, 9216, v254\nv_add3_u32 v2, v2, v240, s45")
    e("v_and_b32 v241, 3, v254\nv_lshrrev_b32 v242, 2, v254\nv_mul_u32_u24 v241, 1152, v241\nv_add_u32 v241, v241, v240\ns_mul_i32 s45, s3, 4608")
    e("v_mul_u32_u24 v4, 18432, v242\nv_add3_u32 v4, v4, v241, s45\nv_mul_u32_u24 v5, 23040, v242\nv_add3_u32 v5, v5, v241, s45\nv_add_u32 v6, 18432, v241")
    e("v_lshrrev_b32 v241, 2, v0\nv_mul_u32_u24 v3, 9216, v241\nv_lshlrev_b32 v241, 1, v255\nv_xor_b32 v241, v241, v253\nv_lshl_add_u32 v3, v241, 4, v3\ns_mul_i32 s45, s7, 147456\nv_add_u32 v3, s45, v3")
    e("v_lshlrev_b32 v240, 6, v252\nv_lshl_add_u32 v240, v253, 3, v240\nv_and_b32 v241, 1, v250")
    e(f"s_lshl_b32 s45, s7, 9\ns_add_u32 s45, s45, {RING}\nv_add_u32 v24, s45, v240\nv_add_u32 v25, 49152, v24")
    e("v_lshl_add_u32 v7, v250, 10, v24\nv_lshl_add_u32 v7, v241, 5, v7\nv_xor_b32 v9, 32, v7\nv_add_u32 v8, 49152, v7\nv_add_u32 v10, 49152, v9")
    e(f"v_xor_b32 v242, s7, v241\nv_lshl_add_u32 v11, v250, 9, v240\nv_lshl_add_u32 v11, v242, 5, v11\nv_add_u32 v11, {RING}, v11\nv_add_u32 v12, 49152, v11")
    e(f"v_lshl_add_u32 v242, v250, 3, v252\nv_lshlrev_b32 v242, 8, v242\nv_add_u32 v242, {RING}, v242")
    e("v_lshlrev_b32 v243, 6, v252\nv_lshl_add_u32 v243, v241, 5, v243\ns_mul_i32 s46, s4, 72\ns_and_b32 s46, s46, 15\nv_add_u32 v243, s46, v243")
    e("s_mul_i32 s46, s7, 40\nv_lshl_add_u32 v244, v253, 3, v243\nv_add_u32 v244, s46, v244")
    for m in range(3):
        e(f"v_add_u32 v245, {80*m}, v244\nv_and_b32 v245, 255, v245\nv_add_u32 v{13+2*m}, v245, v242\nv_add_u32 v{14+2*m}, 49152, v{13+2*m}")
    e("v_min_u32 v245, 2, v253\nv_mul_u32_u24 v245, 80, v245\nv_add3_u32 v245, v245, v243, 32\nv_and_b32 v245, 255, v245\nv_add_u32 v19, v245, v242\nv_add_u32 v20, 49152, v19")
    e("v_lshlrev_b32 v23, 4, v0\ns_lshl_b32 s45, s3, 11\nv_add_u32 v21, s45, v23\ns_xor_b32 s45, s45, 2048\nv_add_u32 v22, s45, v23")
    e("v_lshlrev_b32 v242, 2, v250\nv_sub_u32 v242, v251, v242\nv_mov_b32 v26, 0\nv_mov_b32 v27, 0\nv_mov_b32 v30, 0\nv_mov_b32 v31, 0\nv_mov_b32 v243, 0x3f80\nv_mov_b32 v244, 0x3f800000")
    for k in range(2):
        e(f"v_cmp_eq_u32 vcc, {2*k}, v242\nv_cndmask_b32 v{28+k}, v26, v243, vcc\nv_cmp_eq_u32 vcc, {2*k+1}, v242\nv_cndmask_b32 v{28+k}, v{28+k}, v244, vcc")
    e("s_cmp_eq_u32 s7, 0\ns_cselect_b32 s56, 0xffff, 0\ns_mov_b32 s57, 0\ns_cselect_b32 s58, 0, 0xffff\ns_mov_b32 s59, 0\ns_mov_b32 s60, 0xf000f000\ns_mov_b32 s61, 0xf000f000")
    e("s_mov_b32 s62, 0x3f803f80\ns_mov_b32 s63, 0xffff0000\ns_mov_b32 s64, 0x3fb8aa3b\ns_mov_b32 s65, 0x3fb8aa3b\ns_mov_b32 s66, 0x358637bd\ns_mov_b32 s67, 0x358637bd")
    e("s_mul_i32 s45, s3, 18432\nv_add_u32 v246, s45, v23\ns_xor_b32 s46, s3, 1\ns_mul_i32 s45, s46, 18432\nv_add_u32 v247, s45, v23")
    for r in range(4): e(f"v_mov_b32 v{TM+r}, 0")
    for ks in range(18):
        for r in range(4):
            for tt in range(2):
                x=ACC+8*ks+4*tt+r
                e(f"v_dot2_f32_bf16 v{TM+2*tt}, v{x}, s62, v{TM+2*tt}\nv_dot2_f32_bf16 v{TM+2*tt+1}, v{x}, v{x}, v{TM+2*tt+1}")
    for pl in ("v_permlane32_swap_b32","v_permlane16_swap_b32"):
        for r in range(4): e(f"v_mov_b32 v{TM+4+r}, v{TM+r}")
        for r in range(4): e(f"{pl} v{TM+4+r}, v{TM+r}")
        for r in range(4): e(f"v_add_f32 v{TM+r}, v{TM+r}, v{TM+4+r}")
    for tt in range(2):
        S_,Q_=TM+2*tt,TM+2*tt+1; R_=TM+8+4*tt
        e(f"v_mul_f32 v{S_}, 0x3ae38e39, v{S_}\nv_mul_f32 v{Q_}, 0x3ae38e39, v{Q_}\nv_fma_f32 v{Q_}, -v{S_}, v{S_}, v{Q_}\nv_max_f32 v{Q_}, 0, v{Q_}\nv_add_f32 v{Q_}, 0x3727c5ac, v{Q_}")
        e(f"v_rsq_f32 v{R_}, v{Q_}\nv_mul_f32 v{R_+2}, -v{S_}, v{R_}\nv_mov_b32 v{R_+1}, v{R_}\nv_mov_b32 v{R_+3}, v{R_+2}")
    def norm(ks,tt):
        b=ACC+8*ks+4*tt; R_=TM+8+4*tt; d=b if ks<16 else Xr(ks,tt); t=TM+16+8*tt
        for r in range(4): e(f"v_lshlrev_b32 v{t+2*r}, 16, v{b+r}\nv_and_b32 v{t+2*r+1}, s63, v{b+r}")
        for r in range(4): e(f"v_pk_fma_f32 {V(t+2*r,2)}, {V(t+2*r,2)}, {V(R_,2)}, {V(R_+2,2)}")
        for r in range(4): e(f"v_cvt_pk_bf16_f32 v{d+r}, v{t+2*r}, v{t+2*r+1}")
        return d
    def accw(ks,tt,d):
        if ks<16:
            for r in range(4): e(f"v_accvgpr_write_b32 {V(Xr(ks,tt)+r)}, v{d+r}")
    for ks in range(9):
        for tt in range(2):
            d=norm(ks,tt); e(f"ds_write_b128 v246, {V(d,4)} offset:{(2*ks+tt)*1024}"); accw(ks,tt,d)
    g.wait(lg=g.lg); e("s_barrier")
    rd=[f"ds_read_b128 {X(ks,2+tt)}, v247 offset:{(2*ks+tt)*1024}" for ks in range(9) for tt in range(2)]
    for ks in range(9,16):
        for tt in range(2):
            d=norm(ks,tt); accw(ks,tt,d)
            for _ in range(2):
                if rd: e(rd.pop(0))
    g.wait(lg=g.lg); e("s_barrier")
    for ks in range(9,16):
        for tt in range(2): e(f"ds_write_b128 v246, {V(ACC+8*ks+4*tt,4)} offset:{(2*(ks-9)+tt)*1024}")
    g.wait(lg=g.lg)
    for ks in range(16,18):
        for tt in range(2):
            d=norm(ks,tt); e(f"ds_write_b128 v246, {V(d,4)} offset:{(2*(ks-9)+tt)*1024}")
    g.wait(vm=dmaseq[0],lg=g.lg); e("s_barrier")
    for ks in range(9,18):
        for tt in range(2): e(f"ds_read_b128 {X(ks,2+tt)}, v247 offset:{(2*(ks-9)+tt)*1024}")
    ts()
    steps=[]
    def add(S,ra,off,d2,mfs,k16=False): steps.append(dict(S=S,ra=ra,off=off,d2=d2,mf=mfs,k16=k16))
    def mm(d,a,b,first,op=MF): return f"{op} {V(d,4)}, {a}, {b}, {'0' if first else V(d,4)}"
    for S in range(6):
        for kk in range(3):
            ks=3*S+kk
            for m in range(4):
                if m==0: f=lambda fr,ks=ks: [mm(A(0,0,tt),fr,X(ks,tt),ks==0) for tt in range(4)]
                else: f=lambda fr,ks=ks,m=m: [mm(A(m>>1,m&1,tt),X(ks,tt),fr,ks==0) for tt in range(4)]
                add(S,13+2*m,kk*8192,1024,f)
    for b in range(9):
        st=(b+2)%3
        for ks in range(18):
            for ft in range(2):
                f=lambda fr,ks=ks,ft=ft,st=st: [mm(A(st,ft,tt),fr,X(ks,tt),ks==0) for tt in range(4)]
                if b<8: add(6+3*b+ks//6,7+2*ft,(ks%6)*4096,256,f)
                else: add(6+3*b+ks//6,11,(ks%6)*4096+ft*2048,256,f)
    for nb in range(9):
        st=2 if nb%2==0 else 0
        for q in range(11):
            for ft in range(2):
                if q<10:
                    f=lambda fr,q=q,ft=ft,st=st: [mm(A(st,ft,tt),fr,X(q,tt),q==0) for tt in range(4)]
                    add(33+2*nb+q//6,7+2*ft,(q%6)*4096,256,f)
                else:
                    f=lambda fr,ft=ft,st=st: [mm(A(st,ft,tt),fr,V(XV+2*tt,2),False,"v_mfma_f32_16x16x16_bf16") for tt in range(4)]
                    add(34+2*nb,24,16384+32*ft,0,f,True)
    first={}
    for k,s_ in enumerate(steps): first.setdefault(s_['S'],k)
    NS=len(steps)
    def bstep(S): return first[S]-depth
    def reads(k):
        s_=steps[k]; fb=FB+4*(k%NF); sl=s_['S']%3
        ra=s_['ra']+(1 if sl==2 else 0); off=s_['off']+(SLOT if sl==1 else 0)
        r=[f"ds_read_b64_tr_b16 {V(fb,2)}, v{ra} offset:{off}"]
        if not s_['k16']: r.append(f"ds_read_b64_tr_b16 {V(fb+2,2)}, v{ra} offset:{off+s_['d2']}")
        return r
    side=[]
    def task(start,dead,ins): side.append((start,dead,ins))
    def hadr(tt,hi=False,s8=False):
        r = 21+(tt>>1) if not hi else (13+(tt>>1) if not s8 else 15+(tt>>1))
        return r,(tt&1)*1024
    def phi(src,n,t):
        o=[]
        for r in range(0,n,2): o.append(f"v_pk_mul_f32 {V(t+r,2)}, {V(src+r,2)}, s[64:65]")
        for r in range(n): o.append(f"v_exp_f32 v{t+r}, v{t+r} clamp")
        for r in range(n): o.append(f"v_max_f32 v{src+r}, 0, v{src+r}")
        for r in range(0,n,2): o.append(f"v_pk_add_f32 {V(src+r,2)}, {V(src+r,2)}, {V(t+r,2)}")
        for r in range(0,n,2): o.append(f"v_pk_add_f32 {V(src+r,2)}, {V(src+r,2)}, s[66:67]")
        return o
    def pk(d,s0): return f"v_cvt_pk_bf16_f32 v{d}, v{s0}, v{s0+1}"
    Q_,K_,V_,X_=A(0,0,0),A(0,1,0),A(1,0,0),A(1,1,0)
    KA,VB,XB,XA,PP,DT=TM,TM+8,TM+16,TM+24,TM+32,TM+48
    o=[]
    for h in range(2): o+=phi(K_+8*h,8,DT)
    o+=[pk(KA+r,K_+2*r) for r in range(8)]
    for h in range(2): o+=phi(Q_+8*h,8,DT+8)
    o+=[pk(PQ+4*(r>>1)+(r&1),Q_+2*r) for r in range(8)]
    task(73,107,o)
    o=[pk(VB+r,V_+2*r) for r in range(8)]+[pk(XB+r,X_+2*r) for r in range(8)]
    o+=[f"v_mov_b32 v{PP}, s62"]+[f"v_cndmask_b32 v{XB+r}, v{XB+r}, v{PP}, s[60:61]" for r in range(8)]
    for h in range(2): o+=phi(X_+8*h,8,DT)
    o+=[pk(XA+r,X_+2*r) for r in range(8)]
    for u in range(2):
        for n,(a_,b_) in enumerate(((KA,VB),(KA,XB),(XA,VB),(XA,XB))): o.append(mm(PP+4*n,V(a_+4*u,4),V(b_+4*u,4),u==0))
    for tt in range(4): o.append(mm(DT+4*tt,V(XA+4*(tt>>1),4),V(28 if tt%2==0 else 26,4),True))
    o+=["v_add_u32 v17, 73728, v21","v_lshrrev_b32 v19, 4, v0","v_lshlrev_b32 v19, 7, v19","v_sub_u32 v18, v17, v19",
        "s_lshl_b32 s46, s3, 10","v_add_u32 v19, s46, v23","v_add_u32 v13, 65536, v21","v_add_u32 v14, 65536, v22",
        "s_lshl_b32 s46, s7, 3","v_add_u32 v15, s46, v13","v_add_u32 v16, s46, v14"]
    o+=[f"ds_write_b128 v17, {V(PP,4)}",
        f"s_mov_b32 exec_lo, 0xff00ff00\ns_mov_b32 exec_hi, 0xff00ff00\nds_write_b128 v18, {V(PP+4,4)} offset:896\ns_mov_b32 exec_lo, 0xffff0000\ns_mov_b32 exec_hi, 0\nds_write_b128 v17, {V(PP+8,4)} offset:1280\nds_write_b128 v17, {V(PP+12,4)} offset:1536\ns_mov_b64 exec, -1"]
    o+=[pk(PQ+4*(r>>1)+2+(r&1),DT+2*r) for r in range(8)]
    task(73,bstep(11)-1,o)
    o=[f"v_add_u32 v20, 73728, v19",f"ds_read_b128 {V(TM,4)}, v20",f"ds_read_b128 {V(TM+4,4)}, v20 offset:4096","","","",
       f"v_pk_add_f32 {V(TM,2)}, {V(TM,2)}, {V(TM+4,2)}",f"v_pk_add_f32 {V(TM+2,2)}, {V(TM+2,2)}, {V(TM+6,2)}",
       f"buffer_store_dwordx4 {V(TM,4)}, v19, s[36:39], s54 offen sc1"]
    task(bstep(11)+1,bstep(12)-1,o)
    drain={13}
    task(bstep(13)+1,bstep(14),[f"v_mov_b32 v{TM}, 1","s_lshl_b32 s46, s4, 2",f"v_mov_b32 v17, s46","s_mov_b64 exec, 1\nbuffer_atomic_add v%d, v17, s[40:43], 0 offen sc1\ns_mov_b64 exec, -1"%TM])
    def gu_epi(p):
        G_,U_=(2*p+2)%3,(2*p+3)%3; o=[]
        for tt in range(4):
            for ft in range(2):
                o+=[f"v_max_f32 v{A(G_,ft,tt)+r}, 0, v{A(G_,ft,tt)+r}" for r in range(4)]
                o+=[f"v_pk_mul_f32 {V(A(G_,ft,tt)+r,2)}, {V(A(G_,ft,tt)+r,2)}, {V(A(U_,ft,tt)+r,2)}" for r in (0,2)]
            o+=[pk(A(U_,0,tt)+2*ft+h,A(G_,ft,tt)+2*h) for ft in range(2) for h in range(2)]
            r,of=hadr(tt); o.append(f"ds_write_b128 v{r}, {V(A(U_,0,tt),4)} offset:{of+p*16384}")
        return o
    PS=opt.get('pollS',20)
    tl=[]
    for p in range(4): tl.append((72+72*(p+1)+1, 72+72*(p+1)+20, ('gu',p)))
    tl.append((bstep(PS+1)-2,bstep(PS+1)-1,('poll',)))
    tl.append((bstep(PS+3)-3,bstep(PS+3)-1,('chk',)))
    tl.append((bstep(PS+4)-3,bstep(PS+4)+6,('gather',)))
    tl.append((bstep(PS+6)+1,bstep(PS+7)-1,('sum',)))
    tl.append((bstep(PS+7)+1,bstep(34)-1,('o',)))
    tl.append((bstep(32)+1,first[33]-1,('hld',)))
    tl.append((first[33]+1,bstep(34)-1,('hepi',)))
    tl.append((bstep(34)+1,first[34]+3,('hld2',)))
    for nb in range(8): tl.append((first[35+2*nb]+1,first[35+2*nb]+21,('st',nb)))
    tl.sort(key=lambda t:t[0])
    def st_epi(nb):
        st=2 if nb%2==0 else 0; o=[]
        for tt in range(4):
            d=A(st,0,tt)
            o+=[pk(d,d),pk(d+1,d+2),pk(d+2,A(st,1,tt)),pk(d+3,A(st,1,tt)+2)]
            o+=[f"s_add_u32 s46, s53, {nb*2048+(tt&1)*18432}\nbuffer_store_dwordx4 {V(d,4)}, v{1+(tt>>1)}, s[36:39], s46 offen {stf}"]
        return o
    for a_,b_,t in tl:
        if t[0]=='gu':
            o=gu_epi(t[1]); o=[x.replace("ds_write_b128 v21,","ds_write_b128 v30,").replace("ds_write_b128 v22,","ds_write_b128 v31,") for x in o]
            if t[1]==0: o=["s_lshl_b32 s46, s7, 13","v_add_u32 v30, s46, v21","v_add_u32 v31, s46, v22"]+o
        elif t[0]=='poll': o=[f"buffer_load_dword v18, v17, s[40:43], 0 offen sc1"]
        elif t[0]=='chk': o=["v_readfirstlane_b32 s46, v18\ns_cmp_ge_u32 s46, 64\ns_cbranch_scc0 L1_spin\nL1_back:"]
        elif t[0]=='gather': o=[f"s_add_u32 s46, s55, {4096*n}\nbuffer_load_dwordx4 {V(TM+4*n,4)}, v19, s[36:39], s46 offen sc1" for n in range(16)]
        elif t[0]=='sum':
            o=[]
            for h in (32,16,8,4):
                o+=[f"v_pk_add_f32 {V(TM+r,2)}, {V(TM+r,2)}, {V(TM+h+r,2)}" for r in range(0,h,2)]
            o+=[f"ds_write_b128 v20, {V(TM,4)} offset:{86016-73728}"]
            o+=["s_lshl_b32 s46, s7, 11","s_add_u32 s46, s46, 86016","v_add_u32 v26, s46, v23","v_and_b32 v27, 255, v23","v_add_u32 v27, s46, v27",
                "v_and_b32 v29, 1, v0","s_lshl_b32 s47, s7, 1","v_add_u32 v29, s47, v29","v_and_b32 v28, 3, v0","v_cmp_eq_u32 vcc, 3, v28","v_cndmask_b32 v29, v29, 4, vcc",
                "v_lshlrev_b32 v29, 4, v29","v_add_u32 v29, s46, v29","v_lshrrev_b32 v28, 4, v0","v_lshl_add_u32 v28, v28, 7, v29"]
        elif t[0]=='o':
            L=TM+4; E1=TM+20; E2=TM+24; N_=TM+28; M_=TM+44; RC=TM
            o=[f"ds_read_b128 {V(L,4)}, v26",f"ds_read_b128 {V(L+4,4)}, v27 offset:1536",f"ds_read_b128 {V(L+8,4)}, v28 offset:1024",f"ds_read_b128 {V(L+12,4)}, v29 offset:{1792+128}"]
            o+=["v_and_b32 v18, 15, v0","v_lshlrev_b32 v18, 3, v18","s_lshl_b32 s46, s3, 8","s_add_u32 s46, s46, 81920","v_add_u32 v17, s46, v18","s_xor_b32 s46, s46, 256","v_add_u32 v18, s46, v18","s_lshl_b32 s47, s7, 2"]
            o+=[pk(E1+r,L+2*r) for r in range(8)]
            o+=["v_add_u32 v26, s47, v17","v_add_u32 v27, s47, v18"]
            for E in (E1,E2): o+=[f"v_cndmask_b32 v{E+2}, 0, v{E+2}, s[56:57]",f"v_cndmask_b32 v{E+3}, 0, v{E+3}, s[58:59]"]
            for tt in range(4): o+=[mm(M_+4*tt,V(E2,4),V(PQ+4*tt,4),True),mm(N_+4*tt,V(E1,4),V(PQ+4*tt,4),True)]
            o+=["","",""]
            for tt in range(4): o+=[f"v_add_f32 v{RC+tt}, s66, v{M_+4*tt+3}"]
            for tt in range(4): o+=[f"v_rcp_f32 v{RC+tt}, v{RC+tt}"]
            for tt in range(4):
                o+=[f"v_mul_f32 v{N_+4*tt+r}, v{N_+4*tt+r}, v{RC+tt}" for r in range(4)]+[f"v_mul_f32 v{M_+4*tt+r}, v{M_+4*tt+r}, v{RC+tt}" for r in range(2)]
                o+=[pk(N_+4*tt,N_+4*tt),pk(N_+4*tt+1,N_+4*tt+2),pk(M_+4*tt,M_+4*tt)]
                r,of=hadr(tt,True,True)
                o+=[f"ds_write_b64 v{r}, {V(N_+4*tt,2)} offset:{of+8192}",f"ds_write_b32 v{26+(tt>>1)}, v{M_+4*tt} offset:{(tt&1)*128}"]
        elif t[0]=='hld':
            o=[]
            for q in range(8):
                for tt in range(4):
                    r,of=hadr(tt); o.append(f"ds_read_b128 {X(q,tt)}, v{r} offset:{of+q*8192}")
            o+=["s_mul_i32 s46, s3, 36864","s_lshl_b32 s47, s7, 10","s_add_u32 s46, s46, s47","v_add_u32 v1, s46, v23",
                "s_xor_b32 s46, s3, 1","s_mul_i32 s46, s46, 36864","s_add_u32 s46, s46, s47","v_add_u32 v2, s46, v23"]
        elif t[0]=='hepi':
            o=[]
            for tt in range(4):
                a0,a1=A(1,0,tt),A(1,1,tt)
                o+=[f"v_max_f32 v{a0+r}, 0, v{a0+r}" for r in range(4)]+[f"v_pk_mul_f32 {V(a0+r,2)}, {V(a0+r,2)}, {V(a1+r,2)}" for r in (0,2)]
                o+=[pk(a1,a0),pk(a1+1,a0+2)]
                r,of=hadr(tt,True,True); o.append(f"ds_write_b64 v{r}, {V(a1,2)} offset:{of}")
        elif t[0]=='hld2':
            o=[]
            for q in (8,9):
                for tt in range(4):
                    r,of=hadr(tt,True); o.append(f"ds_read_b128 {X(q,tt)}, v{r} offset:{of+(q-8)*8192}")
            o+=[f"v_mov_b32 v{XV+r}, 0" for r in range(8)]
            o.append("s_mov_b64 exec, 0xffff\n"+"\n".join(f"ds_read_b64 {V(XV+2*tt,2)}, v{17+(tt>>1)} offset:{(tt&1)*128}" for tt in range(4))+"\ns_mov_b64 exec, -1")
        elif t[0]=='st': o=st_epi(t[1])
        task(a_,b_,o)
    side.sort(key=lambda t:t[0])
    q=[]
    for a_,b_,ins in side:
        for n,x in enumerate(ins): q.append((a_,b_,x))
    for k in range(depth):
        for x in reads(k): e(x)
    pend_dma=[]
    dm={}
    for S in range(len(stages)-2):
        pos=[1,2,4,5,7,8] if len(stages[S+2])==6 else [1,2,4,5,7]
        for n,p in enumerate(pos): dm[max(bstep(S),-1)+p+(1 if S==0 else 0)]=(S+2,n)
    def sidepop(k,n):
        for _ in range(n):
            if q and q[0][0]<=k:
                a_,b_,x=q.pop(0)
                assert k<=b_, ("deadline",k,b_,x)
                e(x)
    tsat={first[6],first[12],first[30],first[33],first[35]}
    for k in range(NS):
        if k in tsat: ts()
        fr=V(FB+4*(k%NF),2 if steps[k]['k16'] else 4)
        ms=steps[k]['mf'](fr)
        rs=reads(k+depth) if k+depth<NS else []
        d=dma(*dm[k]) if k in dm else None
        nd=dma(*dm[k+1]) if k+1 in dm else None
        e(ms[0])
        if k+depth<NS and first[steps[k+depth]['S']]==k+depth:
            S=steps[k+depth]['S']
            g.wait(vm=(g.vm if S in drain else dmaseq[S]),lg=g.lg); e("s_barrier")
        if rs: e(rs[0])
        else: sidepop(k,1)
        sidepop(k,rate-1)
        e(ms[1])
        if len(rs)>1: e(rs[1])
        else: sidepop(k,1)
        sidepop(k,rate-1)
        e(ms[2])
        if d: e(d[2]); dmaseq[dm[k][0]]=g.vm; sidepop(k,rate-1)
        else: sidepop(k,rate)
        e(ms[3])
        if nd: e(nd[0]); e(nd[1]); sidepop(k,rate-1)
        else: sidepop(k,rate)
    assert not q, q[0]
    for x in st_epi(8): e(x)
    ts()
    if TS:
        e("s_lshl_b32 s46, s2, 8\ns_lshl_b32 s47, s3, 6\ns_add_u32 s46, s46, s47\ns_add_u32 s46, s46, 0x3800000")
        for n in range(nts[0]): e(f"v_mov_b32 v{TM+n}, s{72+2*n}")
        e(f"v_mov_b32 v3, 0\ns_mov_b64 exec, 1\nbuffer_store_dwordx4 {V(TM,4)}, v3, s[36:39], s46 offen\nbuffer_store_dwordx4 {V(TM+4,4)}, v3, s[36:39], s46 offen offset:16")
    g.raw("L1_end:\ns_endpgm")
    g.raw("L1_spin:\ns_mov_b32 s47, 0\nL1_sp2:\ns_sleep 2\nbuffer_load_dword v18, v17, s[40:43], 0 offen sc1\ns_waitcnt vmcnt(0)\nv_readfirstlane_b32 s46, v18\ns_add_u32 s47, s47, 1\ns_cmp_ge_u32 s46, 64\ns_cbranch_scc1 L1_back\ns_cmp_lt_u32 s47, 200000\ns_cbranch_scc1 L1_sp2\ns_branch L1_back")
    print("k1 instrs",g.n,"nop states",g.nops,file=sys.stderr)
    return g.o

def k2(opt):
    g=G(); e=g.e
    ldf=opt.get('ldf','')
    e("s_cmp_ge_u32 s2, 576\ns_cbranch_scc1 L2_end")
    g.raw("s_load_dwordx2 s[20:21], s[0:1], 0\ns_load_dwordx2 s[22:23], s[0:1], 56\ns_load_dwordx2 s[24:25], s[0:1], 72")
    e("v_lshrrev_b32 v1, 6, v0\nv_lshlrev_b32 v2, 4, v0\nv_readfirstlane_b32 s3, v1\ns_lshl_b32 s4, s2, 12")
    g.raw("s_waitcnt lgkmcnt(0)")
    srd(g,16,24,268435456)
    for j in range(16):
        e(f"buffer_load_dwordx4 {V(8+4*j,4)}, v2, s[16:19], s4 offen {ldf}")
        if j<15: e(f"s_add_u32 s4, s4, {PJ}")
    srd(g,8,20,2359296); srd(g,12,22,2359296)
    e("s_lshl_b32 s5, s2, 2\ns_add_u32 s5, s5, s3\ns_mul_i32 s6, s5, 3641\ns_lshr_b32 s6, s6, 16\ns_mul_i32 s7, s6, 18\ns_sub_u32 s7, s5, s7")
    e("s_mul_i32 s6, s6, 18432\ns_lshl_b32 s7, s7, 6\ns_add_u32 s6, s6, s7\ns_mov_b32 s26, 0xffff0000")
    e("v_and_b32 v3, 15, v0\nv_mul_u32_u24 v3, 1152, v3\nv_bfe_u32 v1, v0, 4, 2\nv_lshl_add_u32 v3, v1, 3, v3")
    e("buffer_load_dwordx2 v[4:5], v3, s[8:11], s6 offen\nbuffer_load_dwordx2 v[6:7], v3, s[8:11], s6 offen offset:32")
    for n,j in enumerate(list(range(16))+[-1]):
        b=8+4*j; t=72 if n==0 else 80+8*(n&1)
        for r in range(4): e(f"v_lshlrev_b32 v{t+2*r}, 16, v{b+r}\nv_and_b32 v{t+2*r+1}, s26, v{b+r}")
        if n:
            for r in range(4): e(f"v_pk_add_f32 {V(72+2*r,2)}, {V(72+2*r,2)}, {V(t+2*r,2)}")
    for r in range(4): e(f"v_cvt_pk_bf16_f32 v{4+r}, v{72+2*r}, v{73+2*r}")
    e("buffer_store_dwordx2 v[4:5], v3, s[12:15], s6 offen\nbuffer_store_dwordx2 v[6:7], v3, s[12:15], s6 offen offset:32")
    g.raw("L2_end:\ns_endpgm")
    return g.o

def desc(n,vg,acc):
    return f""".amdhsa_kernel {n}
  .amdhsa_next_free_vgpr {vg}
  .amdhsa_next_free_sgpr 102
  .amdhsa_accum_offset {acc}
  .amdhsa_group_segment_fixed_size 0
  .amdhsa_kernarg_size 80
  .amdhsa_user_sgpr_count 2
  .amdhsa_user_sgpr_kernarg_segment_ptr 1
  .amdhsa_system_sgpr_workgroup_id_x 1
.end_amdhsa_kernel"""
def build(path,opt):
    n1=NAME+"_kernel"; n2="reduce_kernel"
    o=[f"; @launch kernel={n1} grid=(256,1,1) block=(256,1,1) lds=163840",f"; @launch kernel={n2} grid=(576,1,1) block=(256,1,1) lds=0",
       '.amdgcn_target "amdgcn-amd-amdhsa--gfx950"',".text"]
    for n,body in ((n1,k1(opt)),(n2,k2(opt))):
        o+=[f".globl {n}",".p2align 8",f".type {n},@function",f"{n}:"]+body
    o+=['.section .rodata,"a"',".p2align 6",desc(n1,512,256),".p2align 6",desc(n2,96,96)]
    open(path,"w").write("\n".join(o)+"\n")
if __name__=="__main__":
    opt=eval("dict(%s)"%(sys.argv[2] if len(sys.argv)>2 else ""))
    build(sys.argv[1],opt)
```
